```python
import torch

def _softmax(x, axis=-1):
    return torch.softmax(x, dim=axis)
def _gelu(x):
    return torch.nn.functional.gelu(x, approximate="tanh")
def _silu(x):
    return torch.nn.functional.silu(x)
def _sigmoid(x):
    return torch.sigmoid(x)
def _layernorm(x, axis=-1, eps=1e-5):
    m = x.mean(dim=axis, keepdim=True)
    v = x.var(dim=axis, keepdim=True, unbiased=False)
    return (x - m) / torch.sqrt(v + eps)
def _scatter_add(tgt, idx, src, axis=0):
    return tgt.clone().index_add_(axis, idx, src)
def _segment_sum(src, seg, n):
    out = torch.zeros((n,) + src.shape[1:], dtype=src.dtype)
    return out.index_add_(0, seg, src)
def _pad(x, pw):
    flat = tuple(v for pair in reversed(pw) for v in pair)
    return torch.nn.functional.pad(x, flat)

kernel_name = 'recurrent_scan__sliding_block__geglu_ffn__prompt'

def setup_inputs():

    _w = (lambda a: (lambda t: t.to(torch.bfloat16) if t.is_floating_point() else t)(torch.as_tensor(a)))
    def _A_setup():
        B, S, D = 1, 2048, 448
        return {
            "x": _w((lambda *s: torch.randn(*s, dtype=torch.bfloat16) * 0.05)(B, S, D)),
            "wqkv": _w((lambda *s: torch.randn(*s, dtype=torch.bfloat16) * 0.05)(D, 3 * D)),
            "wo": _w((lambda *s: torch.randn(*s, dtype=torch.bfloat16) * 0.05)(D, D)),
        }
    _A_in = _A_setup()

    def _B_setup():
        B, S, D, F = 1, 2048, 448, 1792
        return {
            "x": _w((lambda *s: torch.randn(*s, dtype=torch.bfloat16) * 0.05)(B, S, D)),
            "w_gate": _w((lambda *s: torch.randn(*s, dtype=torch.bfloat16) * 0.05)(D, F)),
            "w_up": _w((lambda *s: torch.randn(*s, dtype=torch.bfloat16) * 0.05)(D, F)),
            "w_down": _w((lambda *s: torch.randn(*s, dtype=torch.bfloat16) * 0.05)(F, D)),
        }
    _B_in = _B_setup()

    return {
        "A_x": _A_in["x"],
        "A_wqkv": _A_in["wqkv"],
        "A_wo": _A_in["wo"],
        "B_x": _B_in["x"],
        "B_w_gate": _B_in["w_gate"],
        "B_w_up": _B_in["w_up"],
        "B_w_down": _B_in["w_down"],
    }

def reference(A_x, A_wqkv, A_wo, B_x, B_w_gate, B_w_up, B_w_down):
    def _A_ref(x, wqkv, wo):
        B, S, D = x.shape
        H = 16; Dh = D // H; W = 256
        qkv = (lambda x, *d: x.permute(*d))((x @ wqkv).reshape(B, S, 3, H, Dh), 2, 0, 3, 1, 4)
        q, k, v = qkv[0], qkv[1], qkv[2]
        scores = torch.einsum("bhqd,bhkd->bhqk", q, k) * (Dh ** -0.5)
        idx = torch.arange(S)
        mask = (idx[:, None] - idx[None, :] >= 0) & (idx[:, None] - idx[None, :] < W)
        scores = torch.where(mask[None, None], scores, -1e9)
        p = _softmax(scores, axis=-1)
        o = torch.einsum("bhqk,bhkd->bhqd", p, v)
        return (lambda x, *d: x.permute(*d))(o, 0, 2, 1, 3).reshape(B, S, D) @ wo

    def _B_ref(x, w_gate, w_up, w_down):
        return (_gelu(x @ w_gate) * (x @ w_up)) @ w_down

    x = A_x
    xn = _layernorm(x, axis=-1)
    s = _A_ref(xn, A_wqkv, A_wo)
    g = _silu(_B_ref(xn, B_w_gate, B_w_up, B_w_down))
    return x + s * g
```

```python
import sys, math
sys.path.insert(0, 'gen')
from fw import *

NAME = "recurrent_scan__sliding_block__geglu_ffn__prompt"
WS_XN = 0x0000000
WS_Q  = 0x0200000
WS_K  = 0x0400000
WS_V  = 0x0600000
WS_H  = 0x0800000
WS_O  = 0x1000000
WS_NULL = 0x1200000
WS_SIZE = 0x1300000
LOG2E = 1.4426950408889634
import struct
def f32(x): return "0x%08x" % struct.unpack("<I", struct.pack("<f", x))[0]
NEGBIG = -1.0e30

def srd(p, d, base, nbytes):
    p.e(f"s_mov_b32 s{d}, s{base}\ns_mov_b32 s{d+1}, s{base+1}\ns_mov_b32 s{d+2}, {nbytes}\ns_mov_b32 s{d+3}, 0x00020000")

def prologue(p, name, nwg):
    p.raw(".p2align 8")
    p.raw(f".type {name},@function")
    p.label(name)
    p.e(f"s_cmp_ge_u32 s2, {nwg}\ns_cbranch_scc1 L_end_{name}")
    p.e("s_load_dwordx16 s[16:31], s[0:1], 0\ns_load_dwordx4 s[32:35], s[0:1], 64")

def epilogue(p, name):
    p.label(f"L_end_{name}")
    p.e("s_endpgm")

def k0():
    p = Prog(); n = "ln_kernel"
    prologue(p, n, 256)
    p.e("""v_lshrrev_b32 v1, 3, v0
    v_and_b32 v2, 7, v0
    s_lshl_b32 s3, s2, 3
    v_add_u32 v3, s3, v1
    v_mul_u32_u24 v3, 896, v3
    v_lshl_add_u32 v3, v2, 4, v3
    s_waitcnt lgkmcnt(0)""")
    srd(p, 4, 16, 1835008)
    srd(p, 8, 34, WS_SIZE)
    for j in range(7):
        p.vm(f"buffer_load_dwordx4 v[{8+4*j}:{11+4*j}], v3, s[4:7], 0 offen offset:{128*j}", f"x{j}")
    p.e("""s_lshr_b32 s12, s2, 2
    s_mul_i32 s12, s12, 28672
    s_and_b32 s13, s2, 3
    s_lshl_b32 s13, s13, 7
    s_add_u32 s12, s12, s13
    v_lshrrev_b32 v4, 1, v2
    v_lshlrev_b32 v4, 10, v4
    v_and_b32 v5, 1, v2
    v_lshl_add_u32 v4, v5, 9, v4
    v_lshl_add_u32 v4, v1, 4, v4
    v_add_u32 v4, s12, v4""")
    nb = struct.unpack("<I", struct.pack("<f", NEGBIG))[0] >> 16
    p.e(f"""s_cmp_lg_u32 s2, 0
    s_cbranch_scc1 L_k0_nonull
    v_mov_b32 v100, 0
    v_mov_b32 v101, 0
    v_mov_b32 v102, 0
    v_mov_b32 v103, 0
    v_lshlrev_b32 v106, 4, v0
    s_mov_b32 s14, {WS_NULL}
    buffer_store_dwordx4 v[100:103], v106, s[8:11], s14 offen
    v_mov_b32 v104, {nb}
    v_cmp_lt_u32 vcc, 31, v0
    s_nop 1
    v_cndmask_b32 v110, 0, v104, vcc
    v_mov_b32 v108, 0
    v_mov_b32 v109, 0
    v_mov_b32 v111, 0
    s_nop 1
    buffer_store_dwordx4 v[108:111], v106, s[8:11], s14 offen offset:1024
    s_waitcnt vmcnt(0)""")
    p.label("L_k0_nonull")
    p.e("s_waitcnt vmcnt(0)"); p.items.append(ResetCnt())
    for j in range(28):
        p.e(f"v_lshlrev_b32 v{40+2*j}, 16, v{8+j}")
        p.e(f"v_and_b32 v{41+2*j}, 0xffff0000, v{8+j}")
    p.e("v_add_f32 v6, v40, v41\nv_add_f32 v7, v42, v43")
    for j in range(4, 56, 2):
        p.e(f"v_add_f32 v6, v6, v{40+j}\nv_add_f32 v7, v7, v{41+j}")
    p.e("v_add_f32 v6, v6, v7")
    def red(r):
        p.e(f"s_nop 1\nv_add_f32_dpp v{r}, v{r}, v{r} quad_perm:[1,0,3,2] row_mask:0xf bank_mask:0xf")
        p.e(f"s_nop 1\nv_add_f32_dpp v{r}, v{r}, v{r} quad_perm:[2,3,0,1] row_mask:0xf bank_mask:0xf")
        p.e(f"s_nop 1\nv_add_f32_dpp v{r}, v{r}, v{r} row_half_mirror row_mask:0xf bank_mask:0xf")
    red(6)
    p.e(f"v_mul_f32 v6, {f32(1.0/448)}, v6")
    for j in range(56):
        p.e(f"v_sub_f32 v{40+j}, v{40+j}, v6")
    p.e("v_mul_f32 v7, v40, v40\nv_mul_f32 v5, v41, v41")
    for j in range(2, 56, 2):
        p.e(f"v_fmac_f32 v7, v{40+j}, v{40+j}\nv_fmac_f32 v5, v{41+j}, v{41+j}")
    p.e("v_add_f32 v7, v7, v5")
    red(7)
    p.e(f"v_mov_b32 v5, {f32(1e-5)}\nv_mov_b32 v2, {f32(1.0/448)}\nv_fmac_f32 v5, v2, v7\nv_rsq_f32 v5, v5\ns_nop 0")
    for j in range(56):
        p.e(f"v_mul_f32 v{40+j}, v{40+j}, v5")
    for j in range(28):
        p.e(f"v_cvt_pk_bf16_f32 v{8+j}, v{40+2*j}, v{41+2*j}")
    for j in range(7):
        p.e(f"s_mov_b32 s14, {4096*j}")
        p.vm(f"buffer_store_dwordx4 v[{8+4*j}:{11+4*j}], v4, s[8:11], s14 offen", "st")
    epilogue(p, n)
    return p, n, dict(vgpr=112, agpr=0, sgpr=40, grid=256, block=64, lds=0)

SLOT = 28672
C0 = -2.0 * 0.7978845608028654 * LOG2E
C1 = C0 * 0.044715
def k1():
    p = Prog(); n = "gemm1_kernel"
    prologue(p, n, 256)
    p.e("""v_lshrrev_b32 v1, 6, v0
    v_and_b32 v0, 63, v0
    s_and_b32 s3, s2, 7
    s_lshr_b32 s4, s2, 3
    v_readfirstlane_b32 s5, v1
    s_and_b32 s6, s3, 1
    s_lshl_b32 s6, s6, 2
    s_and_b32 s7, s4, 3
    s_add_u32 s6, s6, s7
    s_lshr_b32 s7, s3, 1
    s_lshl_b32 s7, s7, 3
    s_lshr_b32 s4, s4, 2
    s_add_u32 s7, s7, s4""")
    p.e("""v_lshlrev_b32 v1, 4, v0
    v_lshrrev_b32 v2, 2, v0
    v_and_b32 v3, 3, v0
    v_mul_u32_u24 v4, 3584, v2
    v_lshl_add_u32 v4, v3, 4, v4
    v_xor_b32 v5, 32, v4
    v_mul_u32_u24 v6, 2688, v2
    v_lshl_add_u32 v6, v3, 4, v6""")
    p.e("""v_lshrrev_b32 v7, 5, v0
    v_lshlrev_b32 v7, 3, v7
    v_and_b32 v8, 3, v2
    v_add_u32 v7, v7, v8
    v_lshlrev_b32 v7, 6, v7
    v_bfe_u32 v8, v0, 4, 1
    v_and_b32 v9, 1, v3
    v_lshl_add_u32 v9, v9, 1, v8
    v_lshl_add_u32 v9, v9, 3, v7
    v_lshrrev_b32 v10, 1, v3
    v_mul_u32_u24 v11, %d, v10
    v_add_u32 v9, v9, v11
    v_xor_b32 v10, 32, v9
    v_lshl_add_u32 v11, v8, 2, v3""" % (SLOT + 32))
    p.e("s_waitcnt lgkmcnt(0)")
    srd(p, 36, 24, 1605632)
    srd(p, 40, 26, 1605632)
    srd(p, 44, 18, 1204224)
    srd(p, 48, 34, WS_SIZE)
    p.e("""s_lshl_b32 s8, s6, 3
    s_lshl_b32 s9, s5, 1
    s_add_u32 s8, s8, s9
    s_mul_i32 s9, s8, 28672""")
    p.e("s_mov_b32 s52, 0\ns_mov_b32 s53, -1")
    p.e("s_mov_b32 s54, 0xf0000000\ns_mov_b32 s55, 0xf0000000")
    p.e("""v_and_b32 v12, 31, v0
    v_cmp_eq_u32 vcc, 28, v12
    v_mov_b32 v13, 0x3f803f80
    s_nop 0
    v_cndmask_b32 v12, 0, v13, vcc""")
    p.e(f"s_mov_b32 s56, {f32(C0)}\ns_mov_b32 s57, {f32(C1)}\nv_mov_b32 v13, s56")
    p.e("s_mul_i32 s10, s5, %d\ns_mul_i32 s11, s5, %d\ns_lshl_b32 s12, s5, 10" % (16 * 3584, 16 * 2688))
    p.e("s_cmp_lt_u32 s7, 16\ns_cbranch_scc1 L_k1_A1\ns_cmp_lt_u32 s7, 24\ns_cbranch_scc1 L_k1_A2\ns_branch L_k1_B")
    head = resolve(p.items)
    bodies = []
    for var in ("A1", "A2", "B"):
        q = Prog(); q.label(f"L_k1_{var}")
        k1_body(q, var)
        q.e(f"s_branch L_end_{n}") if var != "B" else None
        bodies += resolve(q.items)
    e = Prog(); epilogue(e, n)
    return head + bodies + resolve(e.items), n, dict(vgpr=256, agpr=224, sgpr=80, grid=256, block=256, lds=5 * SLOT)

def k1_body(p, var):
    if var in ("A1", "A2"):
        p.e("s_lshl_b32 s62, s7, 2\ns_add_u32 s63, s62, 2")
        tiles = ["s7+32"] if var == "A1" else ["s7-16"]
        if var == "A1": p.e("s_add_u32 s13, s7, 32")
        else: p.e("s_sub_u32 s13, s7, 16")
        nq = 1
    else:
        p.e("s_add_u32 s62, s7, 24\ns_lshl_b32 s62, s62, 1\ns_mov_b32 s63, 0")
        p.e("s_sub_u32 s13, s7, 24\ns_mul_i32 s13, s13, 3\ns_add_u32 s13, s13, 8")
        nq = 3
    p.e("s_lshl_b32 s60, s62, 5\ns_add_u32 s60, s60, s10\ns_lshl_b32 s61, s63, 5\ns_add_u32 s61, s61, s10")
    for i in range(nq):
        p.e(f"""s_add_u32 s14, s13, {i}
        s_lshr_b32 s15, s14, 4
        s_and_b32 s14, s14, 15
        s_and_b32 s{72+i}, s14, 1
        s_mul_i32 s{64+i}, s15, 896
        s_mul_i32 s58, s14, 56
        s_add_u32 s{64+i}, s{64+i}, s58
        s_lshl_b32 s58, s{72+i}, 3
        s_sub_u32 s{64+i}, s{64+i}, s58
        s_add_u32 s{64+i}, s{64+i}, s11
        s_lshl_b32 s{68+i}, s15, 21
        s_lshl_b32 s58, s14, 17
        s_add_u32 s{68+i}, s{68+i}, s58
        s_lshl_b32 s58, s8, 11
        s_add_u32 s{68+i}, s{68+i}, s58
        s_add_u32 s{68+i}, s{68+i}, {WS_Q}
        s_cmp_eq_u32 s15, 0
        s_cselect_b32 s{76+i}, 0x3f80, 0""")
    if nq == 1: slots = [("g", 60), ("u", 60), ("g", 61), ("u", 61), ("q", 64)]
    else:       slots = [("g", 60), ("u", 60), ("q", 64), ("q", 65), ("q", 66)]
    p.e("v_mov_b32 v14, v9\nv_mov_b32 v15, v10")
    if nq == 1:
        p.e(f"v_add_u32 v16, {2*SLOT}, v9\nv_add_u32 v17, {2*SLOT}, v10")
        qs = [(18, 4, 72)]
    else:
        qs = [(16, 2, 72), (17, 3, 73), (18, 4, 74)]
    for (vr, sl, so) in qs:
        p.e(f"v_add_u32 v{vr}, s{so}, v11\nv_and_b32 v{vr}, 7, v{vr}\nv_lshl_add_u32 v{vr}, v{vr}, 3, v7\nv_add_u32 v{vr}, {sl*SLOT}, v{vr}")
    p.e(f"s_mul_i32 s58, s8, {112*1024}\ns_add_u32 s58, s58, {WS_H}\ns_lshl_b32 s62, s62, 10\ns_add_u32 s62, s62, s58\ns_lshl_b32 s63, s63, 10\ns_add_u32 s63, s63, s58")

    def dma(slot, c):
        q = Prog()
        kind, sb = slots[slot]
        rs = 2688 if kind == "q" else 3584
        srdr = {"g": 36, "u": 40, "q": 44}[kind]; vo = {"g": 4, "u": 5, "q": 6}[kind]
        q.e(f"s_add_u32 m0, s12, {slot*SLOT + c*4096}")
        q.e(f"s_add_u32 s59, s{sb}, {c*64*rs}")
        q.vm(f"buffer_load_dwordx4 v{vo}, s[{srdr}:{srdr+3}], s59 offen lds", f"w{slot}_{c}")
        return q
    def xload(c):
        q = Prog()
        for rt in range(2):
            q.e(f"s_add_u32 s59, s9, {rt*28672 + c*4096}")
            for s in range(4):
                a = (rt * 28 + 4 * c + s) * 4
                q.vm(f"buffer_load_dwordx4 a[{a}:{a+3}], v1, s[48:51], s59 offen offset:{s*1024}", f"x{c}")
        return q
    for c in range(6):
        p.ext(dma(0, c)); p.ext(dma(1, c)); p.ext(xload(c))
    later = [("c6",)] + [(sl, c) for c in range(7) for sl in (2, 3)] + [(4, c) for c in range(7)] if nq == 1 else \
            [("c6",)] + [(sl, c) for sl in (2, 3, 4) for c in range(7)]
    def issue_later(k):
        q = Prog()
        for _ in range(k):
            if not later: break
            it = later.pop(0)
            if it[0] == "c6": q.ext(dma(0, 6)); q.ext(dma(1, 6)); q.ext(xload(6))
            else: q.ext(dma(*it))
        return q

    FR = 20
    ACC0 = 64
    ACC1 = 128; ACC2 = 160; ACC3 = 192
    TMP = 224
    def trread(q, vaddr, s, buf, tag):
        r = FR + 4 * buf
        q.ds(f"ds_read_b64_tr_b16 v[{r}:{r+1}], v{vaddr} offset:{s*1024}", tag)
        q.ds(f"ds_read_b64_tr_b16 v[{r+2}:{r+3}], v{vaddr} offset:{s*1024+256}", tag)
    def mf(q, acc, buf, rt, s, swap=False):
        r = FR + 4 * buf; a = (rt * 28 + s) * 4
        c = "0" if s == 0 else f"v[{acc}:{acc+15}]"
        w = f"v[{r}:{r+3}]"; x = f"a[{a}:{a+3}]"
        ops = (x, w) if swap else (w, x)
        q.mfma(f"v_mfma_f32_32x32x16_bf16 v[{acc}:{acc+15}], {ops[0]}, {ops[1]}, {c}")

    def arrive(q, tags):
        for t in tags: q.wvm(t)
        q.e("s_barrier")
    arrive(p, ["w0_0", "w1_0", "x0"])
    for s in (0, 1):
        for t in range(2): trread(p, 14 + t, s, (2 * s + t) % 8, f"p0_{s}")
    for s in range(28):
        c = s // 4
        sn = s + 2
        if sn < 28:
            if sn % 4 == 0:
                arrive(p, [f"w0_{sn//4}", f"w1_{sn//4}", f"x{sn//4}"])
                p.ext(issue_later(1 if sn == 4 else 3))
            for t in range(2): trread(p, 14 + t, sn, (2 * sn + t) % 8, f"p0_{sn}")
        p.wlg(f"p0_{s}")
        for t in range(2):
            for rt in range(2):
                mf(p, ACC0 + 32 * t + 16 * rt, (2 * s + t) % 8, rt, s)
    p.ext(issue_later(100))

    def epi_gu(acc, sbase, off, tmp):
        q = Prog()
        T = tmp
        for half in range(2):
            g0 = acc + 8 * half; u0 = g0 + 4
            for j in range(4): q.e(f"v_mul_f32 v{T+j}, v{g0+j}, v{g0+j}")
            for j in range(4): q.e(f"v_fma_f32 v{T+j}, v{T+j}, s57, v13")
            for j in range(4): q.e(f"v_mul_f32 v{T+j}, v{T+j}, v{g0+j}")
            for j in range(4): q.e(f"v_exp_f32 v{T+j}, v{T+j}")
            for j in range(4): q.e(f"v_mul_f32 v{u0+j}, v{u0+j}, v{g0+j}")
            for j in range(4): q.e(f"v_add_f32 v{T+j}, 1.0, v{T+j}")
            for j in range(4): q.e(f"v_rcp_f32 v{T+j}, v{T+j}")
            q.e("s_nop 0")
            for j in range(4): q.e(f"v_mul_f32 v{u0+j}, v{u0+j}, v{T+j}")
            q.e(f"v_cvt_pk_bf16_f32 v{T+4+2*half}, v{u0}, v{u0+1}")
            q.e(f"v_cvt_pk_bf16_f32 v{T+5+2*half}, v{u0+2}, v{u0+3}")
        q.e(f"s_add_u32 s59, s{sbase}, {off}")
        q.vm(f"buffer_store_dwordx4 v[{T+4}:{T+7}], v1, s[48:51], s59 offen", "st")
        return q
    def epi_q(acc, qi, rt, tmp, isv):
        q = Prog(); T = tmp
        for j in range(8): q.e(f"v_cvt_pk_bf16_f32 v{T+j}, v{acc+2*j}, v{acc+2*j+1}")
        if isv:
            for j in range(8): q.e(f"v_cndmask_b32 v{T+j}, v{T+j}, v12, s[54:55]")
        else:
            q.e(f"v_mov_b32 v19, s{76+qi}")
            q.e(f"v_cndmask_b32 v{T+6}, v{T+6}, v19, s[52:53]")
            q.e(f"v_cndmask_b32 v{T+7}, v{T+7}, 0, s[52:53]")
        q.vm(f"buffer_store_dwordx4 v[{T}:{T+3}], v1, s[48:51], s{68+qi} offen offset:{rt*2048}", "st")
        q.vm(f"buffer_store_dwordx4 v[{T+4}:{T+7}], v1, s[48:51], s{68+qi} offen offset:{rt*2048+1024}", "st")
        return q
    H_RT = 112 * 1024
    pend = Prog()
    ti = 0
    def tmpnext():
        nonlocal ti
        ti ^= 1
        return TMP + 8 * ti + 0
    for t in range(2):
        for rt in range(2):
            pend.ext(epi_gu(ACC0 + 32 * t + 16 * rt, 62, rt * H_RT + t * 1024, tmpnext()))
    accs = [ACC1, ACC2, ACC3]
    for pi in range(3):
        tile = 2 + pi
        acc = accs[pi]
        if nq == 1: kind = "gu" if pi < 2 else ("v" if var == "A1" else "q")
        else: kind = "q"
        q = Prog()
        need = ([2, 3] if kind == "gu" else [tile])
        bi = 0
        def arr(qq, c):
            if kind == "gu" and pi == 1: return
            arrive(qq, [f"w{sl}_{c}" for sl in need])
        arr(q, 3)
        for s in (0, 1, 2): trread(q, 14 + tile, s, s % 8, f"p{tile}_{s}")
        for s in range(28):
            sn = s + 3
            if sn < 28:
                if sn == 16: arr(q, 6)
                trread(q, 14 + tile, sn, sn % 8, f"p{tile}_{sn}")
            q.wlg(f"p{tile}_{s}")
            for rt in range(2):
                mf(q, acc + 16 * rt, s % 8, rt, s, swap=(kind == "v"))
        if pi == 0:
            half = len(pend.items) // 2
            cur = pend.items[:half]; rest = pend.items[half:]
        else:
            cur = pend.items; rest = []
        p.ext(merge(q, cur, start=6))
        pend = Prog(); pend.items = list(rest)
        for rt in range(2):
            if kind == "gu": pend.ext(epi_gu(acc + 16 * rt, 63, rt * H_RT + pi * 1024, tmpnext()))
            else: pend.ext(epi_q(acc + 16 * rt, (0 if nq == 1 else pi), rt, tmpnext(), kind == "v"))
    p.e("s_nop 15\ns_nop 3")
    p.ext(pend)

def k2():
    p = Prog(); n = "attn_kernel"
    prologue(p, n, 256)
    p.e("""v_lshrrev_b32 v1, 6, v0
    v_and_b32 v0, 63, v0
    s_and_b32 s3, s2, 7
    s_lshr_b32 s4, s2, 3
    v_readfirstlane_b32 s5, v1
    s_lshr_b32 s6, s4, 4
    s_lshl_b32 s3, s3, 1
    s_add_u32 s6, s6, s3
    s_and_b32 s7, s4, 15
    s_lshl_b32 s7, s7, 2
    s_add_u32 s7, s7, s5
    v_lshlrev_b32 v1, 4, v0
    s_lshl_b32 s8, s6, 17
    s_lshl_b32 s9, s7, 11
    s_add_u32 s8, s8, s9
    s_waitcnt lgkmcnt(0)""")
    srd(p, 48, 34, WS_SIZE)
    p.e(f"s_add_u32 s9, s8, {WS_Q}")
    p.vm("buffer_load_dwordx4 v[8:11], v1, s[48:51], s9 offen", "q")
    p.vm("buffer_load_dwordx4 v[12:15], v1, s[48:51], s9 offen offset:1024", "q")
    order = list(range(8, -1, -1))
    for part, wsb, ab in (("k", WS_K, 0), ("v", WS_V, 72)):
        for j in order:
            p.e(f"s_add_u32 s9, s8, {wsb - (8-j)*2048}")
            if j < 8:
                p.e(f"s_cmp_lt_u32 s7, {8-j}\ns_cselect_b32 s9, {WS_NULL}, s9")
            p.vm(f"buffer_load_dwordx4 a[{ab+8*j}:{ab+8*j+3}], v1, s[48:51], s9 offen", f"{part}{j}")
            p.vm(f"buffer_load_dwordx4 a[{ab+8*j+4}:{ab+8*j+7}], v1, s[48:51], s9 offen offset:1024", f"{part}{j}")
    p.e(f"""v_and_b32 v2, 31, v0
    v_lshrrev_b32 v3, 5, v0
    v_lshlrev_b32 v3, 2, v3
    v_sub_u32 v2, v2, v3
    v_mov_b32 v4, {f32(NEGBIG)}""")
    for r in range(16):
        k = 8 * (r >> 2) + (r & 3)
        p.e(f"v_cmp_le_i32 vcc, {k}, v2\ns_nop 1\nv_cndmask_b32 v{16+r}, v4, 0, vcc\nv_cndmask_b32 v{32+r}, 0, v4, vcc")
    S0 = 64
    p.wvm("q")
    mx = Prog()
    qk = Prog()
    first = True
    for j in order:
        a = 8 * j; s = S0 + 16 * j
        c = "v[16:31]" if j == 8 else ("v[32:47]" if j == 0 else "0")
        qk.wvm(f"k{j}")
        qk.mfma(f"v_mfma_f32_32x32x16_bf16 v[{s}:{s+15}], a[{a}:{a+3}], v[8:11], {c}")
        qk.mfma(f"v_mfma_f32_32x32x16_bf16 v[{s}:{s+15}], a[{a+4}:{a+7}], v[12:15], v[{s}:{s+15}]")
        if first:
            mx.e(f"v_max3_f32 v5, v{s}, v{s+1}, v{s+2}\nv_max3_f32 v6, v{s+3}, v{s+4}, v{s+5}")
            for r in range(6, 14, 4): mx.e(f"v_max3_f32 v5, v5, v{s+r}, v{s+r+1}\nv_max3_f32 v6, v6, v{s+r+2}, v{s+r+3}")
            mx.e(f"v_max3_f32 v5, v5, v{s+14}, v{s+15}")
            first = False
        else:
            for r in range(0, 16, 4): mx.e(f"v_max3_f32 v5, v5, v{s+r}, v{s+r+1}\nv_max3_f32 v6, v6, v{s+r+2}, v{s+r+3}")
    body = Prog()
    qi = qk.items; mi = mx.items
    per = [mi[0:7]] + [mi[7 + 8 * i: 15 + 8 * i] for i in range(8)]
    blocks = [qi[3 * i: 3 * i + 3] for i in range(9)]
    for i in range(9):
        body.ext(blocks[i][:2]);
        if i >= 2: body.ext(per[i - 2][:4])
        body.ext(blocks[i][2:])
        if i >= 2: body.ext(per[i - 2][4:])
    body.ext(per[7]); body.e("s_nop 7"); body.ext(per[8])
    p.ext(body)
    p.e(f"""v_max_f32 v5, v5, v6
    v_mov_b32 v6, v5
    s_nop 1
    v_permlane32_swap_b32 v5, v6
    s_nop 0
    v_max_f32 v5, v5, v6
    s_mov_b32 s10, {f32(28 ** -0.5 * LOG2E)}
    v_mul_f32 v5, s10, v5""")
    O = 48
    first = True
    pv_prev = None
    for j in order:
        s = S0 + 16 * j; a = 72 + 8 * j
        ex = Prog()
        for h in range(2):
            b = s + 8 * h
            for r in range(8): ex.e(f"v_fma_f32 v{b+r}, v{b+r}, s10, -v5")
            for r in range(8): ex.e(f"v_exp_f32 v{b+r}, v{b+r}")
        for r in range(8): ex.e(f"v_cvt_pk_bf16_f32 v{s+r}, v{s+2*r}, v{s+2*r+1}")
        its = ex.items
        if pv_prev is not None:
            p.ext(its[:4]); p.ext(pv_prev[:2]); p.ext(its[4:20]); p.ext(pv_prev[2:]); p.ext(its[20:])
        else:
            p.ext(its)
        pv = Prog()
        pv.wvm(f"v{j}")
        pv.mfma(f"v_mfma_f32_32x32x16_bf16 v[{O}:{O+15}], a[{a}:{a+3}], v[{s}:{s+3}], " + ("0" if first else f"v[{O}:{O+15}]"))
        pv.mfma(f"v_mfma_f32_32x32x16_bf16 v[{O}:{O+15}], a[{a+4}:{a+7}], v[{s+4}:{s+7}], v[{O}:{O+15}]")
        pv_prev = pv.items; first = False
    p.e("s_nop 1"); p.ext(pv_prev)
    p.e(f"""s_mov_b32 s52, 0
    s_mov_b32 s53, -1
    s_lshl_b32 s9, s7, 15
    s_lshl_b32 s11, s6, 11
    s_add_u32 s9, s9, s11
    s_add_u32 s9, s9, {WS_O}
    s_nop 7
    v_mov_b32 v5, v{O+12}
    v_mov_b32 v6, v{O+12}
    s_nop 1
    v_permlane32_swap_b32 v5, v6
    s_nop 0
    v_rcp_f32 v6, v6
    s_nop 0""")
    for r in range(16): p.e(f"v_mul_f32 v{O+r}, v{O+r}, v6")
    for r in range(8): p.e(f"v_cvt_pk_bf16_f32 v{8+r}, v{O+2*r}, v{O+2*r+1}")
    p.e("v_cndmask_b32 v14, v14, 0, s[52:53]\nv_cndmask_b32 v15, v15, 0, s[52:53]")
    p.vm("buffer_store_dwordx4 v[8:11], v1, s[48:51], s9 offen", "st")
    p.vm("buffer_store_dwordx4 v[12:15], v1, s[48:51], s9 offen offset:1024", "st")
    epilogue(p, n)
    return p, n, dict(vgpr=208, agpr=144, sgpr=80, grid=256, block=256, lds=0)

def k3():
    p = Prog(); n = "gemm2_kernel"
    RING = 18; RB = RING * 2048
    prologue(p, n, 224)
    p.e("""v_lshrrev_b32 v1, 6, v0
    v_mov_b32 v19, v0
    v_and_b32 v0, 63, v0
    s_and_b32 s3, s2, 7
    s_lshr_b32 s4, s2, 3
    v_readfirstlane_b32 s5, v1
    s_lshl_b32 s6, s3, 2
    s_and_b32 s7, s4, 3
    s_add_u32 s6, s6, s7
    s_lshr_b32 s7, s4, 2
    v_lshlrev_b32 v1, 4, v0""")
    p.e("""v_and_b32 v2, 7, v0
    v_bfe_u32 v3, v0, 4, 1
    v_lshlrev_b32 v3, 2, v3
    v_xor_b32 v2, v2, v3
    v_lshlrev_b32 v2, 4, v2
    v_lshrrev_b32 v3, 3, v0
    v_mul_u32_u24 v4, 896, v3
    v_add_u32 v4, v4, v2
    v_and_b32 v5, 3, v3
    v_lshrrev_b32 v6, 5, v0
    v_lshl_add_u32 v5, v6, 3, v5
    v_mul_u32_u24 v5, 896, v5
    v_add_u32 v5, v5, v2""")
    p.e(f"""v_bfe_u32 v7, v0, 2, 2
    v_lshl_add_u32 v8, v6, 3, v7
    v_lshlrev_b32 v8, 7, v8
    v_lshrrev_b32 v7, 1, v7
    v_lshl_add_u32 v8, v7, 6, v8
    v_bfe_u32 v7, v0, 4, 1
    v_lshl_add_u32 v8, v7, 5, v8
    v_and_b32 v7, 1, v0
    v_lshl_add_u32 v8, v7, 4, v8
    v_bfe_u32 v7, v0, 1, 1
    v_lshl_add_u32 v8, v7, 3, v8
    s_mul_i32 s12, s5, {RB}
    v_add_u32 v8, s12, v8
    v_xor_b32 v9, 64, v8
    s_waitcnt lgkmcnt(0)""")
    srd(p, 36, 28, 1605632)
    srd(p, 40, 20, 401408)
    srd(p, 44, 16, 1835008)
    srd(p, 48, 34, WS_SIZE)
    srd(p, 52, 30, 1835008)
    p.e("""v_lshrrev_b32 v10, 2, v19
    v_and_b32 v11, 3, v19
    s_lshl_b32 s8, s6, 6
    v_add_u32 v12, s8, v10
    v_mul_u32_u24 v12, 896, v12
    v_lshl_add_u32 v12, v11, 4, v12
    s_lshl_b32 s9, s7, 7""")
    p.vm("buffer_load_dwordx4 v[240:243], v12, s[44:47], s9 offen", "xx")
    p.vm("buffer_load_dwordx4 v[244:247], v12, s[44:47], s9 offen offset:64", "xx")
    p.e("""v_and_b32 v13, 31, v0
    v_lshl_add_u32 v13, v6, 2, v13
    s_lshl_b32 s13, s5, 14""")
    for i, add in enumerate((0, 8, 32, 40)):
        p.e(f"v_add_u32 v{14+i}, {add}, v13\nv_and_b32 v{14+i}, 63, v{14+i}\nv_lshlrev_b32 v{14+i}, 4, v{14+i}\nv_lshl_add_u32 v{14+i}, v6, 11, v{14+i}\nv_add_u32 v{14+i}, s13, v{14+i}")
    p.e("""v_lshl_add_u32 v18, v11, 2, v10
    v_and_b32 v18, 63, v18
    v_lshlrev_b32 v18, 4, v18
    v_lshl_add_u32 v18, v11, 11, v18""")
    p.e(f"""s_mul_i32 s10, s6, {2*112*1024}
    s_mul_i32 s11, s5, {36*1024}
    s_add_u32 s10, s10, s11
    s_add_u32 s10, s10, {WS_H}
    s_lshl_b32 s11, s6, 16
    s_add_u32 s11, s11, {WS_O}
    s_mul_i32 s14, s5, {36*16*896}
    s_add_u32 s14, s14, s9
    s_cmp_eq_u32 s5, 3
    s_cbranch_scc1 L_k3_w3""")
    head = resolve(p.items)
    bodies = []
    FR = 20; HD = 14
    G = 64; S = 128
    for var in (0, 3):
        q = Prog()
        if var == 3: q.label("L_k3_w3")
        q.items.append(I("s_nop 0", vm="xx")); q.items.append(I("s_nop 0", vm="xx"))
        def isg(s): return var == 0 or s < 4
        def issue(s):
            r = Prog()
            slot = s % RING
            for i in range(2):
                r.e(f"s_add_u32 m0, s12, {slot*2048 + i*1024}")
                if isg(s):
                    r.e(f"s_add_u32 s59, s14, {(16*s+8*i)*896}")
                    r.vm(f"buffer_load_dwordx4 v4, s[36:39], s59 offen lds", f"w{s}")
                else:
                    ks = s - 4; hd, b = ks >> 1, ks & 1
                    r.e(f"s_add_u32 s59, s9, {(28*hd+16*b+4*i)*896}")
                    r.vm(f"buffer_load_dwordx4 v5, s[40:43], s59 offen lds", f"w{s}")
            for rt in range(2):
                a = (s % HD) * 8 + 4 * rt
                if isg(s): r.e(f"s_add_u32 s59, s10, {rt*112*1024 + s*1024}")
                else: r.e(f"s_add_u32 s59, s11, {rt*32*1024 + (s-4)*1024}")
                r.vm(f"buffer_load_dwordx4 a[{a}:{a+3}], v1, s[48:51], s59 offen", f"w{s}")
            return r
        def trr(r, s):
            for ct in range(2):
                b = FR + 8 * (s % 3) + 4 * ct
                off = (s % RING) * 2048
                r.ds(f"ds_read_b64_tr_b16 v[{b}:{b+1}], v{8+ct} offset:{off}", f"f{s}")
                r.ds(f"ds_read_b64_tr_b16 v[{b+2}:{b+3}], v{8+ct} offset:{off+512}", f"f{s}")
        for s in range(HD): q.ext(issue(s))
        for s in (0, 1):
            q.wvm(f"w{s}"); trr(q, s)
        for s in range(36):
            if s + 2 < 36:
                q.wvm(f"w{s+2}"); trr(q, s + 2)
            q.wlg(f"f{s}")
            base = G if isg(s) else S
            firstk = (s == 0) or (s == 4 and var == 3)
            k = 0
            nxt = issue(s + HD).items if s + HD < 36 else []
            for ct in range(2):
                for rt in range(2):
                    acc = base + 32 * ct + 16 * rt
                    b = FR + 8 * (s % 3) + 4 * ct; a = (s % HD) * 8 + 4 * rt
                    q.mfma(f"v_mfma_f32_32x32x16_bf16 v[{acc}:{acc+15}], v[{b}:{b+3}], a[{a}:{a+3}], " + ("0" if firstk else f"v[{acc}:{acc+15}]"))
            q.ext(nxt)
        q.e("s_nop 15\ns_nop 3\ns_barrier")
        def wr(base, extra):
            for ct in range(2):
                for rt in range(2):
                    for b in range(2):
                        for qq in range(2):
                            r = base + 32 * ct + 16 * rt + 8 * b + 4 * qq
                            q.ds(f"ds_write_b128 v{14+rt*2+b}, v[{r}:{r+3}] offset:{extra + ct*8192 + b*4096 + qq*1024}", "wr")
        wr(G, 0)
        if var == 3: wr(S, 16384)
        q.e("s_waitcnt lgkmcnt(0)")
        if var == 0: q.e("s_branch L_k3_fin")
        bodies += resolve(q.items)
    f = Prog()
    f.label("L_k3_fin")
    f.e("s_barrier")
    for i in range(2):
        for pp in range(5):
            for qq in range(2):
                r = 64 + i * 40 + pp * 8 + qq * 4
                off = pp * 16384 + i * 8192 + qq * 1024
                if off > 65535:
                    f.ds(f"ds_read_b128 v[{r}:{r+3}], v20 offset:{off-65536}", f"r{i}")
                else:
                    f.ds(f"ds_read_b128 v[{r}:{r+3}], v18 offset:{off}", f"r{i}")
            if i == 0 and pp == 0: f.e("v_add_u32 v20, 0x10000, v18")
    f.e(f"s_mov_b32 s10, {f32(-LOG2E)}\ns_waitcnt vmcnt(0)")
    for i in range(2):
        f.wlg(f"r{i}")
        b = 64 + i * 40
        for e in range(8): f.e(f"v_add_f32 v{b+e}, v{b+e}, v{b+8+e}")
        for e in range(8): f.e(f"v_add_f32 v{b+16+e}, v{b+16+e}, v{b+24+e}")
        for e in range(8): f.e(f"v_add_f32 v{b+e}, v{b+e}, v{b+16+e}")
        for e in range(8): f.e(f"v_mul_f32 v{b+8+e}, s10, v{b+e}")
        for e in range(8): f.e(f"v_exp_f32 v{b+8+e}, v{b+8+e}")
        for e in range(8): f.e(f"v_mul_f32 v{b+e}, v{b+e}, v{b+32+e}")
        for e in range(8): f.e(f"v_add_f32 v{b+8+e}, 1.0, v{b+8+e}")
        for e in range(8): f.e(f"v_rcp_f32 v{b+8+e}, v{b+8+e}")
        xr = 240 + 4 * i
        for e in range(4):
            f.e(f"v_lshlrev_b32 v{b+16+2*e}, 16, v{xr+e}\nv_and_b32 v{b+17+2*e}, 0xffff0000, v{xr+e}")
        for e in range(8): f.e(f"v_fmac_f32 v{b+16+e}, v{b+e}, v{b+8+e}")
        for e in range(4): f.e(f"v_cvt_pk_bf16_f32 v{b+e}, v{b+16+2*e}, v{b+17+2*e}")
        f.vm(f"buffer_store_dwordx4 v[{b}:{b+3}], v12, s[52:55], s9 offen offset:{64*i}", "st")
    epilogue(f, n)
    return head + bodies + resolve(f.items), n, dict(vgpr=256, agpr=HD * 8, sgpr=80, grid=224, block=256, lds=4 * RB)

def build(path):
    ks = [k0(), k1(), k2(), k3()]
    ref = open(f"cdna_kernels/{NAME}.s.ref").read().split("\n")
    hdr = [l for l in ref if l.startswith(";") and "@launch" not in l and "Override" not in l and "grid=ceil" not in l][:11]
    header = "\n".join(hdr) + "\n"
    for _, n, d in ks:
        header += f"; @launch kernel={n} grid=({d['grid']},1,1) block=({d['block']},1,1) lds={d['lds']}\n"
    header += '.amdgcn_target "amdgcn-amd-amdhsa--gfx950"\n.text\n'
    lines = []
    for pr, n, d in ks:
        lines.append((f".globl {n}", False))
        lines += pr if isinstance(pr, list) else resolve(pr.items)
    footer = '.section .rodata,"a"\n'
    for _, n, d in ks:
        acc = (d['vgpr'] + 3) // 4 * 4
        footer += f""".p2align 6
.amdhsa_kernel {n}
  .amdhsa_next_free_vgpr {acc + d['agpr']}
  .amdhsa_next_free_sgpr {d['sgpr']}
  .amdhsa_accum_offset {acc}
  .amdhsa_group_segment_fixed_size 0
  .amdhsa_kernarg_size 80
  .amdhsa_user_sgpr_count 2
  .amdhsa_user_sgpr_kernarg_segment_ptr 1
  .amdhsa_system_sgpr_workgroup_id_x 1
.end_amdhsa_kernel
"""
    txt = align8(lines, header, footer)
    open(path, "w").write(txt)
    return txt

if __name__ == "__main__":
    out = sys.argv[1] if len(sys.argv) > 1 else f"cdna_kernels/{NAME}.s"
    build(out)
    print("wrote", out)
```
